```python
import torch

def _softmax(x, axis=-1):
    return torch.softmax(x, dim=axis)
def _gelu(x):
    return torch.nn.functional.gelu(x, approximate="tanh")
def _silu(x):
    return torch.nn.functional.silu(x)
def _sigmoid(x):
    return torch.sigmoid(x)
def _layernorm(x, axis=-1, eps=1e-5):
    m = x.mean(dim=axis, keepdim=True)
    v = x.var(dim=axis, keepdim=True, unbiased=False)
    return (x - m) / torch.sqrt(v + eps)
def _scatter_add(tgt, idx, src, axis=0):
    return tgt.clone().index_add_(axis, idx, src)
def _segment_sum(src, seg, n):
    out = torch.zeros((n,) + src.shape[1:], dtype=src.dtype)
    return out.index_add_(0, seg, src)
def _pad(x, pw):
    flat = tuple(v for pair in reversed(pw) for v in pair)
    return torch.nn.functional.pad(x, flat)

kernel_name = 'interleave_layers__spectral_fnet__swiglu_ffn__prompt'

def setup_inputs():

    _w = (lambda a: (lambda t: t.to(torch.bfloat16) if t.is_floating_point() else t)(torch.as_tensor(a)))
    def _A_setup():
        B, S, D = 1, 2048, 512
        ns = torch.arange(S)[:, None] * torch.arange(S)[None, :]
        nd = torch.arange(D)[:, None] * torch.arange(D)[None, :]
        Ws_re = torch.cos(-2.0 * torch.pi * ns / S).to(float)
        Ws_im = torch.sin(-2.0 * torch.pi * ns / S).to(float)
        Wd_re = torch.cos(-2.0 * torch.pi * nd / D).to(float)
        Wd_im = torch.sin(-2.0 * torch.pi * nd / D).to(float)
        return {
            "x": _w((lambda *s: torch.randn(*s, dtype=torch.bfloat16) * 0.05)(B, S, D)),
            "dft_seq_re": _w(Ws_re),
            "dft_seq_im": _w(Ws_im),
            "dft_hid_re": _w(Wd_re),
            "dft_hid_im": _w(Wd_im),
        }
    _A_in = _A_setup()

    def _B_setup():
        B, S, D, F = 1, 2048, 512, 1792
        return {
            "x": _w((lambda *s: torch.randn(*s, dtype=torch.bfloat16) * 0.05)(B, S, D)),
            "w_gate": _w((lambda *s: torch.randn(*s, dtype=torch.bfloat16) * 0.4)(D, F)),
            "w_up": _w((lambda *s: torch.randn(*s, dtype=torch.bfloat16) * 0.4)(D, F)),
            "w_down": _w((lambda *s: torch.randn(*s, dtype=torch.bfloat16) * 0.4)(F, D)),
        }
    _B_in = _B_setup()

    return {
        "A_x": _A_in["x"],
        "A_dft_seq_re": _A_in["dft_seq_re"],
        "A_dft_seq_im": _A_in["dft_seq_im"],
        "A_dft_hid_re": _A_in["dft_hid_re"],
        "A_dft_hid_im": _A_in["dft_hid_im"],
        "B_x": _B_in["x"],
        "B_w_gate": _B_in["w_gate"],
        "B_w_up": _B_in["w_up"],
        "B_w_down": _B_in["w_down"],
    }

def reference(A_x, A_dft_seq_re, A_dft_seq_im, A_dft_hid_re, A_dft_hid_im, B_x, B_w_gate, B_w_up, B_w_down):
    def _A_ref(x, dft_seq_re, dft_seq_im, dft_hid_re, dft_hid_im):
        a = torch.einsum("bsd,ed->bse", x, dft_hid_re)
        b = torch.einsum("bsd,ed->bse", x, dft_hid_im)
        y = torch.einsum("ts,bse->bte", dft_seq_re, a) - torch.einsum("ts,bse->bte", dft_seq_im, b)
        return y

    def _B_ref(x, w_gate, w_up, w_down):
        g = _silu(x @ w_gate)
        u = x @ w_up
        return (g * u) @ w_down

    x = A_x
    x = x + _A_ref(_layernorm(x, axis=-1), A_dft_seq_re, A_dft_seq_im, A_dft_hid_re, A_dft_hid_im)
    x = x + _B_ref(_layernorm(x, axis=-1), B_w_gate, B_w_up, B_w_down)
    x = x + _A_ref(_layernorm(x, axis=-1), A_dft_seq_re, A_dft_seq_im, A_dft_hid_re, A_dft_hid_im)
    x = x + _B_ref(_layernorm(x, axis=-1), B_w_gate, B_w_up, B_w_down)
    return x
```

```python
NAME = "interleave_layers__spectral_fnet__swiglu_ffn__prompt"
HDR = open("cdna_kernels/%s.s.ref" % NAME).read().split("; Override launch")[0]

P_X, P_SRE, P_SIM, P_HRE, P_HIM, P_BX, P_WG, P_WU, P_WD, P_OUT, P_DBG, P_WS = [8 * i for i in range(12)]
WS_WGT = 0
WS_WUT = WS_WGT + 1792 * 512 * 2
WS_WDT = WS_WUT + 1792 * 512 * 2
WS_XN = WS_WDT + 1792 * 512 * 2
WS_ABT = WS_XN + 2048 * 512 * 2
WS_X1 = WS_ABT + 1024 * 2048 * 2
WS_X2 = WS_X1 + 2048 * 512 * 2
WS_X3 = WS_X2 + 2048 * 512 * 2
WS_H = WS_X3 + 2048 * 512 * 2

out = []
launches = []
kds = []
def e(s=""): out.append(s)
def kernel(name, grid, block, lds=0, vgpr=128):
    launches.append((name, grid, block, lds))
def begin(name):
    e(".globl %s\n.p2align 8\n.type %s,@function\n%s:" % (name, name, name))
def desc(name, vgpr=128, acc=None):
    kds.append(""".p2align 6
.amdhsa_kernel %s
  .amdhsa_next_free_vgpr %d
  .amdhsa_next_free_sgpr 102
  .amdhsa_accum_offset %d
  .amdhsa_group_segment_fixed_size 0
  .amdhsa_kernarg_size 96
  .amdhsa_user_sgpr_count 2
  .amdhsa_user_sgpr_kernarg_segment_ptr 1
  .amdhsa_system_sgpr_workgroup_id_x 1
.end_amdhsa_kernel""" % (name, vgpr, acc or vgpr))
def srd(dst, karg, off, size):
    e("    s_load_dwordx2 s[%d:%d], s[0:1], %d" % (dst, dst + 1, karg))
    e("    s_waitcnt lgkmcnt(0)")
    if off:
        e("    s_add_u32 s%d, s%d, %d" % (dst, dst, off))
        e("    s_addc_u32 s%d, s%d, 0" % (dst + 1, dst + 1))
    e("    s_mov_b32 s%d, %d" % (dst + 2, size))
    e("    s_mov_b32 s%d, 0x00020000" % (dst + 3))

def k_transpose():
    name = "tr_kernel"
    begin(name)
    e("    s_cmp_ge_u32 s2, %d" % (3 * 3584))
    e("    s_cbranch_scc1 L_tr_end")
    e("    s_mov_b32 s20, 0")
    e("    s_cmp_ge_u32 s2, 3584\n    s_cselect_b32 s20, 1, s20\n    s_cmp_ge_u32 s2, 7168\n    s_cselect_b32 s20, 2, s20")
    e("    s_mul_i32 s21, s20, 3584\n    s_sub_u32 s21, s2, s21")
    e("    s_lshl_b32 s21, s21, 8\n    v_add_u32 v1, s21, v0")
    srd(4, P_WG, 0, 512 * 1792 * 2)
    srd(8, P_WU, 0, 512 * 1792 * 2)
    srd(12, P_WD, 0, 512 * 1792 * 2)
    srd(16, P_WS, 0, WS_XN)
    e("    s_cmp_eq_u32 s20, 2\n    s_cbranch_scc1 L_tr_wd")
    e("    v_lshrrev_b32 v2, 9, v1\n    v_and_b32 v3, 511, v1\n    v_mul_u32_u24 v3, 1792, v3\n    v_add_u32 v3, v3, v2\n    v_lshlrev_b32 v3, 1, v3")
    e("    s_cmp_eq_u32 s20, 1\n    s_cbranch_scc1 L_tr_wu")
    e("    buffer_load_ushort v4, v3, s[4:7], 0 offen\n    s_branch L_tr_st")
    e("L_tr_wu:\n    buffer_load_ushort v4, v3, s[8:11], 0 offen\n    s_branch L_tr_st")
    e("L_tr_wd:")
    e("    s_mov_b32 s22, 2396746\n    v_mul_hi_u32 v2, v1, s22")
    e("    v_mul_u32_u24 v3, 1792, v2\n    v_sub_u32 v3, v1, v3\n    v_lshlrev_b32 v3, 9, v3\n    v_add_u32 v3, v3, v2\n    v_lshlrev_b32 v3, 1, v3")
    e("    buffer_load_ushort v4, v3, s[12:15], 0 offen")
    e("L_tr_st:")
    e("    s_mul_i32 s23, s20, %d" % (1792 * 512 * 2))
    e("    v_lshlrev_b32 v1, 1, v1\n    v_add_u32 v1, s23, v1\n    s_waitcnt vmcnt(0)\n    buffer_store_short v4, v1, s[16:19], 0 offen")
    e("L_tr_end:\n    s_endpgm")
    desc(name, 16)
    kernel(name, (3 * 3584, 1, 1), (256, 1, 1))

def k_ln(name, src_karg, src_off):
    begin(name)
    e("    s_cmp_ge_u32 s2, 512\n    s_cbranch_scc1 L_%s_end" % name)
    srd(4, src_karg, src_off, 2048 * 512 * 2)
    srd(8, P_WS, WS_XN, 2048 * 512 * 2)
    e("    v_lshrrev_b32 v1, 6, v0\n    s_lshl_b32 s20, s2, 2\n    v_add_u32 v1, s20, v1")
    e("    v_and_b32 v2, 63, v0\n    v_lshlrev_b32 v2, 4, v2\n    v_lshl_add_u32 v1, v1, 10, v2")
    e("    buffer_load_dwordx4 v[4:7], v1, s[4:7], 0 offen\n    s_waitcnt vmcnt(0)")
    for i in range(4):
        e("    v_lshlrev_b32 v%d, 16, v%d\n    v_and_b32 v%d, 0xffff0000, v%d" % (8 + 2 * i, 4 + i, 9 + 2 * i, 4 + i))
    e("    v_add_f32 v16, v8, v9")
    for i in range(10, 16): e("    v_add_f32 v16, v16, v%d" % i)
    def wred(r):
        for off in (0x041F, 0x081F, 0x101F, 0x201F, 0x401F):
            e("    ds_swizzle_b32 v17, v%d offset:0x%x\n    s_waitcnt lgkmcnt(0)\n    v_add_f32 v%d, v%d, v17" % (r, off, r, r))
        e("    v_mov_b32 v17, v%d\n    s_nop 1\n    v_permlane32_swap_b32 v17, v%d\n    s_nop 1" % (r, r))
        e("    v_add_f32 v%d, v%d, v17" % (r, r))
    wred(16)
    e("    v_mul_f32 v16, 0x3b000000, v16")
    for i in range(8, 16): e("    v_sub_f32 v%d, v%d, v16" % (i, i))
    e("    v_mul_f32 v18, v8, v8")
    for i in range(9, 16): e("    v_fmac_f32 v18, v%d, v%d" % (i, i))
    wred(18)
    e("    v_mov_b32 v19, 0x3727c5ac\n    v_fmac_f32 v19, 0x3b000000, v18\n    v_rsq_f32 v19, v19\n    s_nop 0")
    for i in range(8, 16): e("    v_mul_f32 v%d, v%d, v19" % (i, i))
    for i in range(4): e("    v_cvt_pk_bf16_f32 v%d, v%d, v%d" % (4 + i, 8 + 2 * i, 9 + 2 * i))
    e("    buffer_store_dwordx4 v[4:7], v1, s[8:11], 0 offen")
    e("L_%s_end:\n    s_endpgm" % name)
    desc(name, 32)
    kernel(name, (512, 1, 1), (256, 1, 1))

def k_gemm(name, A, B, mt, nt, K, epi, A2=None, B2=None, res=None, dst=None, dstride=None):
    begin(name)
    nw = mt * nt // 4
    e("    s_cmp_ge_u32 s2, %d\n    s_cbranch_scc1 L_%s_end" % (nw, name))
    srd(4, A[0], A[1], A[2]); srd(8, B[0], B[1], B[2])
    if A2: srd(12, A2[0], A2[1], A2[2]); srd(16, B2[0], B2[1], B2[2])
    srd(24, dst[0], dst[1], dst[2])
    if res: srd(28, res[0], res[1], res[2])
    e("    v_lshrrev_b32 v1, 6, v0\n    s_nop 0\n    v_readfirstlane_b32 s20, v1\n    s_lshl_b32 s21, s2, 2\n    s_add_u32 s20, s20, s21")
    magic = (2**32 + mt - 1) // mt
    e("    s_mov_b32 s36, %d\n    s_mul_hi_u32 s21, s20, s36\n    s_mul_i32 s22, s21, %d\n    s_sub_u32 s22, s20, s22" % (magic, mt))
    e("    v_and_b32 v2, 31, v0\n    v_bfe_u32 v3, v0, 5, 1")
    e("    s_lshl_b32 s32, s22, 5\n    s_lshl_b32 s33, s21, 5")
    e("    v_add_u32 v4, s32, v2\n    v_add_u32 v5, s33, v2")
    e("    s_mov_b32 s34, %d\n    s_mov_b32 s35, %d" % (A[3], B[3]))
    e("    v_mul_lo_u32 v4, v4, s34\n    v_mul_lo_u32 v5, v5, s35\n    v_lshlrev_b32 v6, 4, v3\n    v_add_u32 v4, v4, v6\n    v_add_u32 v5, v5, v6")
    for i in range(32): e("    v_mov_b32 v%d, 0" % (32 + i))
    e("    s_mov_b32 s37, 0")
    e("L_%s_k:" % name)
    e("    buffer_load_dwordx4 v[8:11], v4, s[4:7], s37 offen\n    buffer_load_dwordx4 v[12:15], v5, s[8:11], s37 offen")
    if A2:
        e("    buffer_load_dwordx4 v[16:19], v4, s[12:15], s37 offen\n    buffer_load_dwordx4 v[20:23], v5, s[16:19], s37 offen")
    e("    s_waitcnt vmcnt(0)")
    e("    v_mfma_f32_32x32x16_bf16 v[32:47], v[8:11], v[12:15], v[32:47]")
    if A2: e("    v_mfma_f32_32x32x16_bf16 v[48:63], v[16:19], v[20:23], v[48:63]")
    e("    s_add_u32 s37, s37, 32\n    s_cmp_lt_u32 s37, %d\n    s_cbranch_scc1 L_%s_k" % (K * 2, name))
    e("    s_nop 15\n    s_nop 3")
    if epi == "sub":
        for r in range(16): e("    v_sub_f32 v%d, v%d, v%d" % (32 + r, 32 + r, 48 + r))
    if epi == "swiglu":
        for r in range(16):
            e("    v_mul_f32 v8, 0xbfb8aa3b, v%d\n    v_exp_f32 v8, v8\n    s_nop 0\n    v_add_f32 v8, 1.0, v8\n    v_rcp_f32 v8, v8\n    s_nop 0" % (32 + r))
            e("    v_mul_f32 v%d, v%d, v8\n    v_mul_f32 v%d, v%d, v%d" % (32 + r, 32 + r, 32 + r, 32 + r, 48 + r))
    e("    v_add_u32 v5, s33, v2\n    s_mov_b32 s35, %d\n    v_mul_lo_u32 v5, v5, s35\n    v_lshlrev_b32 v6, 3, v3\n    v_add_u32 v5, v5, v6\n    s_lshl_b32 s32, s32, 1\n    v_add_u32 v5, s32, v5" % dstride)
    if res:
        for j in range(4): e("    buffer_load_dwordx2 v[%d:%d], v5, s[28:31], 0 offen offset:%d" % (8 + 2 * j, 9 + 2 * j, 16 * j))
        e("    s_waitcnt vmcnt(0)")
        for j in range(4):
            for p in range(2):
                e("    v_lshlrev_b32 v20, 16, v%d\n    v_and_b32 v21, 0xffff0000, v%d" % (8 + 2 * j + p, 8 + 2 * j + p))
                e("    v_add_f32 v%d, v%d, v20\n    v_add_f32 v%d, v%d, v21" % (32 + 4 * j + 2 * p, 32 + 4 * j + 2 * p, 33 + 4 * j + 2 * p, 33 + 4 * j + 2 * p))
    for j in range(4):
        e("    v_cvt_pk_bf16_f32 v8, v%d, v%d\n    v_cvt_pk_bf16_f32 v9, v%d, v%d" % (32 + 4 * j, 33 + 4 * j, 34 + 4 * j, 35 + 4 * j))
        e("    buffer_store_dwordx2 v[8:9], v5, s[24:27], 0 offen offset:%d\n    s_nop 1" % (16 * j))
    e("L_%s_end:\n    s_endpgm" % name)
    desc(name, 64)
    kernel(name, (nw, 1, 1), (256, 1, 1))

XB = 2048 * 512 * 2
def layer(i, xin, x1, x2):
    k_ln("lnA%d_kernel" % i, *xin)
    k_gemm("g1re%d_kernel" % i, (P_WS, WS_XN, XB, 1024), (P_HRE, 0, 512 * 512 * 2, 1024), 64, 16, 512, None, dst=(P_WS, WS_ABT, XB), dstride=4096)
    k_gemm("g1im%d_kernel" % i, (P_WS, WS_XN, XB, 1024), (P_HIM, 0, 512 * 512 * 2, 1024), 64, 16, 512, None, dst=(P_WS, WS_ABT + XB, XB), dstride=4096)
    k_gemm("g2_%d_kernel" % i, (P_WS, WS_ABT, XB, 4096), (P_SRE, 0, 2048 * 2048 * 2, 4096), 16, 64, 2048, "sub",
           A2=(P_WS, WS_ABT + XB, XB), B2=(P_SIM, 0, 2048 * 2048 * 2), res=(xin[0], xin[1], XB), dst=(P_WS, x1, XB), dstride=1024)
    k_ln("lnB%d_kernel" % i, P_WS, x1)
    k_gemm("g3_%d_kernel" % i, (P_WS, WS_WGT, 1792 * 1024, 1024), (P_WS, WS_XN, XB, 1024), 56, 64, 512, "swiglu",
           A2=(P_WS, WS_WUT, 1792 * 1024), B2=(P_WS, WS_XN, XB), dst=(P_WS, WS_H, 2048 * 3584), dstride=3584)
    k_gemm("g4_%d_kernel" % i, (P_WS, WS_WDT, 512 * 3584, 3584), (P_WS, WS_H, 2048 * 3584, 3584), 16, 64, 1792, None,
           res=(P_WS, x1, XB), dst=(x2[0], x2[1], XB), dstride=1024)

k_transpose()
layer(0, (P_X, 0), WS_X1, (P_WS, WS_X2))
layer(1, (P_WS, WS_X2), WS_X3, (P_OUT, 0))

import sys
extra = int(sys.argv[2]) if len(sys.argv) > 2 else 0
if extra:
    begin("nop_kernel"); e("    s_endpgm"); desc("nop_kernel", 16)
    for i in range(extra): kernel("nop_kernel", (256, 1, 1), (256, 1, 1))
txt = HDR
for (n, g, b, l) in launches:
    txt += "; @launch kernel=%s grid=(%d,%d,%d) block=(%d,%d,%d) lds=%d\n" % (n, *g, *b, l)
txt += '.amdgcn_target "amdgcn-amd-amdhsa--gfx950"\n.text\n' + "\n".join(out) + '\n.section .rodata,"a"\n' + "\n".join(kds) + "\n"
open(sys.argv[1], "w").write(txt)
```

```python
import re

REG_RE = re.compile(r'\b([vas])\[(\d+):(\d+)\]|\b([vas])(\d+)\b|\b(vcc|exec|m0|scc)\b')
TRANS = ("v_exp_f32", "v_log_f32", "v_rcp_f32", "v_rsq_f32", "v_sqrt_f32", "v_sin_f32", "v_cos_f32", "v_rcp_iflag_f32")
S_NODST = ("s_cmp", "s_waitcnt", "s_barrier", "s_branch", "s_cbranch", "s_nop", "s_setprio", "s_sleep", "s_endpgm", "s_bitcmp", "s_setreg")

def regs_in(op):
    out = []
    for m in REG_RE.finditer(op):
        if m.group(1):
            out += [(m.group(1), i) for i in range(int(m.group(2)), int(m.group(3)) + 1)]
        elif m.group(4):
            out.append((m.group(4), int(m.group(5))))
        else:
            n = m.group(6)
            if n == "vcc": out += [("s", "vcc")]
            elif n == "exec": out += [("s", "exec")]
            elif n == "m0": out += [("s", "m0")]
    return out

class Ins:
    __slots__ = ("text", "op", "cls", "defs", "uses", "ops", "passes", "srcC", "trans", "dpp", "wide_store", "states", "lds_dma", "mfma_ab")
    def __init__(self, text):
        self.text = text
        t = text.split(";")[0].strip()
        parts = t.split(None, 1)
        self.op = op = parts[0]
        rest = parts[1] if len(parts) > 1 else ""
        ops = [o.strip() for o in split_ops(rest)]
        self.ops = ops
        self.defs, self.uses = [], []
        self.passes = 0; self.srcC = []; self.trans = False; self.dpp = False; self.wide_store = []; self.states = 1; self.lds_dma = False; self.mfma_ab = []
        R = [regs_in(o) for o in ops]
        allr = lambda lst: [r for x in lst for r in x]
        if op == "s_nop":
            self.cls = "nop"; self.states = int(ops[0], 0) + 1
        elif op.startswith("v_mfma"):
            self.cls = "mfma"
            self.defs = R[0]; self.uses = R[1] + R[2] + R[3]; self.srcC = R[3]; self.mfma_ab = R[1] + R[2]
            self.passes = 8 if "32x32" in op else 4
        elif op.startswith("v_"):
            self.cls = "valu"
            base = re.sub(r"_e(32|64)$", "", op)
            self.trans = base in TRANS
            self.dpp = ("row_" in rest) or ("quad_perm" in rest) or ("wave_" in rest) or op.endswith("_dpp")
            if base.startswith("v_cmp"):
                self.defs = R[0]; self.uses = allr(R[1:])
            elif base.startswith(("v_add_co", "v_sub_co", "v_addc_co", "v_subb_co", "v_subrev_co")):
                self.defs = R[0] + R[1]; self.uses = allr(R[2:])
            elif base.startswith("v_permlane") and "swap" in base:
                self.defs = R[0] + R[1]; self.uses = R[0] + R[1]
            elif base.startswith(("v_fmac", "v_dot2c", "v_pk_fmac", "v_writelane")):
                self.defs = R[0]; self.uses = allr(R)
            elif base == "v_nop":
                pass
            else:
                self.defs = R[0]; self.uses = allr(R[1:])
                if self.dpp or "op_sel" in rest and base.startswith("v_cvt"): self.uses += R[0]
        elif op.startswith(("buffer_", "global_")):
            self.cls = "vmem"
            if op.startswith(("buffer_inv", "buffer_wbl2")):
                pass
            elif "_load" in op:
                if re.search(r"\blds\b", rest) or "_lds_" in op:
                    self.lds_dma = True; self.uses = allr(R) + [("s", "m0")]
                else:
                    self.defs = R[0]; self.uses = allr(R[1:])
                    if "d16" in op: self.uses += R[0]
            elif "_store" in op:
                self.uses = allr(R)
                data = R[0] if op.startswith("buffer_") else R[1]
                if len(data) >= 3: self.wide_store = data
            elif "_atomic" in op:
                self.uses = allr(R)
                if re.search(r"\bsc0\b", rest): self.defs = R[0]
            else:
                raise ValueError(text)
        elif op.startswith("ds_"):
            self.cls = "ds"
            if op.startswith(("ds_read", "ds_bpermute", "ds_permute", "ds_swizzle")):
                self.defs = R[0]; self.uses = allr(R[1:])
            else:
                self.uses = allr(R)
        elif op.startswith(("s_load", "s_memtime", "s_memrealtime", "s_buffer_load")):
            self.cls = "smem"; self.defs = R[0]; self.uses = allr(R[1:])
        elif op.startswith("s_"):
            self.cls = "salu"
            if op.startswith(S_NODST):
                self.uses = allr(R)
            elif "saveexec" in op:
                self.defs = R[0] + [("s", "exec")]; self.uses = allr(R[1:]) + [("s", "exec")]
            else:
                self.defs = R[0]; self.uses = allr(R[1:])
        else:
            raise ValueError("unknown instr: " + text)

def split_ops(s):
    out, depth, cur = [], 0, ""
    for ch in s:
        if ch == "[" or ch == "(": depth += 1
        if ch == "]" or ch == ")": depth -= 1
        if ch == "," and depth == 0:
            out.append(cur); cur = ""
        else:
            cur += ch
    if cur.strip(): out.append(cur)
    return out

class K:
    def __init__(self):
        self.lines = []
        self.hist = []
        self.vm = []
        self.lg = []
        self.ninst = 0
        self.nopcount = 0
        self.check = True
    def raw(self, text):
        self.lines.append(text)
    def comment(self, text):
        self.lines.append("    ; " + text)
    def label(self, name):
        self.lines.append(name + ":")
    def _emit(self, ins):
        self.lines.append("    " + ins.text)
        self.hist.append(ins)
        if len(self.hist) > 40: self.hist.pop(0)
        self.ninst += 1
    def nop(self, n):
        while n > 0:
            c = min(n, 16)
            self._emit(Ins("s_nop %d" % (c - 1))); self.nopcount += 1
            n -= c
    def _emit_wait(self, vm, lg):
        parts = []
        if vm is not None: parts.append("vmcnt(%d)" % vm)
        if lg is not None: parts.append("lgkmcnt(%d)" % lg)
        if parts: self._emit(Ins("s_waitcnt " + " ".join(parts)))
    def _wait(self, vm=None, lg=None):
        self._emit_wait(vm, lg)
        for q, n in ((self.vm, vm), (self.lg, lg)):
            if n is None: continue
            keep = 0; cnt = 0
            for e in reversed(q):
                if cnt >= n: break
                keep += 1
                if not e.get("maybe"): cnt += 1
            del q[:len(q) - keep]
    def _cnt(self, q, idx, cap):
        n = sum(1 for e in q[idx + 1:] if not e.get("maybe"))
        return min(cap, n)
    def _wait_idx(self, vi, li):
        vm = lg = None
        if vi >= 0: vm = self._cnt(self.vm, vi, 63)
        if li >= 0:
            lg = self._cnt(self.lg, li, 15)
            if any(e["smem"] for e in self.lg): lg = 0
        self._emit_wait(vm, lg)
        if vi >= 0: del self.vm[:vi + 1]
        if li >= 0:
            if lg == 0: self.lg.clear()
            else: del self.lg[:li + 1]
        if vm == 0: self.vm.clear()
    def _need(self, q, pred):
        idx = -1
        for i, e in enumerate(q):
            if pred(e): idx = i
        return idx
    def wait_vm_tag(self, tag):
        self._wait_idx(self._need(self.vm, lambda e: e["tag"] == tag), -1)
    def wait_lg_tag(self, tag):
        self._wait_idx(-1, self._need(self.lg, lambda e: e["tag"] == tag))
    def wait_vm(self, n=0):
        if len(self.vm) > n: self._wait(vm=n)
    def wait_lg(self, n=0):
        if len(self.lg) > n: self._wait(lg=n)
    def wait_all(self):
        vm = 0 if self.vm else None; lg = 0 if self.lg else None
        self._wait(vm, lg)
    def force_wait(self, vm=None, lg=None):
        self._wait(vm, lg)
    def _auto_wait(self, ins):
        touched = set(ins.uses) | set(ins.defs)
        vi = self._need(self.vm, lambda e: e["regs"] & touched)
        li = self._need(self.lg, lambda e: e["regs"] & touched)
        if vi >= 0 or li >= 0: self._wait_idx(vi, li)
    def cond_begin(self):
        return (list(self.vm), list(self.lg))
    def cond_end(self, saved, label):
        vm0, lg0 = saved
        self.fence()
        newvm = [dict(e, maybe=True) for e in self.vm if not any(e is x for x in vm0)]
        newlg = [dict(e, maybe=True) for e in self.lg if not any(e is x for x in lg0)]
        self.vm[:] = vm0 + newvm
        self.lg[:] = lg0 + newlg
        self.label(label)
        self.hist.clear()
        self._emit(Ins("s_nop 1")) if False else None
    def _hazard(self, ins):
        need = 0
        dist = 0
        U, D = set(ins.uses), set(ins.defs)
        Uv = {r for r in U if r[0] in "va"}; Dv = {r for r in D if r[0] in "va"}
        Us = {r for r in U if r[0] == "s"}
        for p in reversed(self.hist):
            pd = set(p.defs)
            req = 0
            if p.cls == "valu":
                pdv = {r for r in pd if r[0] in "va"}; pds = {r for r in pd if r[0] == "s"}
                if ins.cls == "mfma" and pdv & Uv: req = max(req, 2)
                if ins.cls == "valu":
                    if p.trans and not ins.trans and pdv & Uv: req = max(req, 1)
                    if p.trans and ins.trans and pdv & Uv: req = max(req, 1)
                    if ins.op.startswith(("v_readfirstlane", "v_readlane")) and pdv & Uv: req = max(req, 1)
                    if ins.op.startswith("v_permlane") and pdv & (Uv | Dv): req = max(req, 2)
                    if ins.dpp and pdv & Uv: req = max(req, 2)
                    if pds & Us:
                        req = max(req, 4 if ins.op.startswith(("v_readlane", "v_writelane")) else 2)
                    if ("s", "exec") in pds and ins.dpp: req = max(req, 5)
                if ins.cls == "vmem" and pds & Us: req = max(req, 5)
                if ins.cls == "mfma" and ("s", "exec") in pds: req = max(req, 4)
                if ins.cls == "salu" and pds & Us: req = max(req, 1)
                if ins.cls in ("vmem", "ds") and p.trans and pdv & Uv: req = max(req, 1)
            if p.cls == "mfma":
                t = {4: 8, 8: 12}[p.passes]
                if ins.cls == "mfma":
                    if pd & set(ins.mfma_ab): req = max(req, t)
                    c = set(ins.srcC)
                    if pd & c and not (pd == c and p.passes == ins.passes): req = max(req, {4: 6, 8: 10}[p.passes])
                    if pd & set(ins.defs) and not (pd == set(ins.defs) and p.passes == ins.passes and pd == c): req = max(req, {4: 6, 8: 10}[p.passes])
                elif ins.cls in ("valu", "vmem", "ds"):
                    if pd & (Uv | Dv): req = max(req, t)
                    if ins.cls == "valu" and set(p.srcC) & Dv: req = max(req, {4: 3, 8: 7}[p.passes])
            if p.cls == "salu":
                if ("s", "m0") in pd and (ins.lds_dma or ins.op.startswith("ds_") and "addtid" in ins.op): req = max(req, 1)
            if p.wide_store and set(p.wide_store) & Dv:
                req = max(req, 2 if ins.cls in ("valu", "mfma") else 1)
            if req > dist: need = max(need, req - dist)
            dist += p.states
            if dist >= 24: break
        if need > 0: self.nop(need)
    def __call__(self, text, tag=None):
        for line in text.strip().split("\n"):
            line = line.strip()
            if not line or line.startswith(";"): continue
            if line.endswith(":"):
                self.label(line[:-1]); continue
            ins = Ins(line)
            if ins.op == "s_waitcnt":
                vm = re.search(r"vmcnt\((\d+)\)", line); lg = re.search(r"lgkmcnt\((\d+)\)", line)
                self._wait(int(vm.group(1)) if vm else None, int(lg.group(1)) if lg else None); continue
            if ins.cls != "nop":
                self._auto_wait(ins)
                self._hazard(ins)
            self._emit(ins)
            if ins.cls == "vmem":
                self.vm.append({"regs": set(ins.defs), "tag": tag})
                while sum(1 for e in self.vm if not e.get("maybe")) > 63: del self.vm[0]
            elif ins.cls == "ds":
                self.lg.append({"regs": set(ins.defs), "tag": tag, "smem": False})
            elif ins.cls == "smem":
                self.lg.append({"regs": set(ins.defs), "tag": tag, "smem": True})
    def fence(self, n=None):
        dist = 0; need = 0
        for p in reversed(self.hist):
            req = 0
            if p.cls == "mfma": req = {4: 8, 8: 12}[p.passes]
            elif p.cls == "valu": req = 5 if any(r[0] == "s" for r in p.defs) else 2
            elif p.cls == "salu" and ("s", "m0") in p.defs: req = 1
            elif p.wide_store: req = 2
            if req > dist: need = max(need, req - dist)
            dist += p.states
            if dist >= 16: break
        if need: self.nop(need)
    def state_sig(self):
        return (tuple((tuple(sorted(map(str, e["regs"]))), e["tag"]) for e in self.vm), tuple((tuple(sorted(map(str, e["regs"]))), e["tag"]) for e in self.lg))
    def text(self):
        return "\n".join(self.lines) + "\n"

def weave(main, fill, slots):
    out = []; j = 0
    for i, m in enumerate(main):
        out.append(m)
        n = slots[i] if isinstance(slots, (list, tuple)) else slots
        for _ in range(n):
            if j < len(fill): out.append(fill[j]); j += 1
    out += fill[j:]
    return out
```

```python
import sys
sys.path.insert(0, "gen"); sys.path.insert(0, "tools")
from dsl import *
from hl import *
def build(name, shape, lds_reads, valu, n_outer, active):
    k = K()
    k.raw(".globl %s\n.p2align 8\n.type %s,@function\n%s:" % (name, name, name))
    k("""
    s_load_dwordx2 s[16:17], s[0:1], 16
    s_load_dwordx2 s[8:9], s[0:1], 0
    v_lshrrev_b32 v2, 6, v0
    v_readfirstlane_b32 s20, v2
    v_and_b32 v1, 63, v0
    v_lshlrev_b32 v3, 4, v1
    s_mov_b32 s10, 0x10000000
    s_mov_b32 s11, 0x00020000
    s_waitcnt lgkmcnt(0)
    """)
    k("s_lshr_b32 s21, s2, 3\ns_cmp_ge_u32 s21, %d\ns_cbranch_scc1 L_e_%s" % (active, name))
    k("s_lshl_b32 s22, s20, 16\nv_add_u32 v4, s22, v3")
    for i in range(32): k("buffer_load_dwordx4 a[%d:%d], v4, s[8:11], 0 offen offset:%d" % (4 * i, 4 * i + 3, (i % 4) * 1024) + ("" if True else ""))
    for i in range(8): k("buffer_load_dwordx4 v[%d:%d], v4, s[8:11], 0 offen offset:%d" % (48 + 4 * i, 51 + 4 * i, (i % 4) * 1024))
    k("s_mov_b32 m0, 0")
    k("s_lshl_b32 s23, s20, 14\ns_mov_b32 m0, s23")
    for i in range(16):
        k("buffer_load_dwordx4 v4, s[8:11], 0 offen offset:%d lds" % ((i % 4) * 1024)); k("s_add_u32 m0, m0, 1024")
    k("s_waitcnt vmcnt(0)\ns_barrier")
    for i in range(64): k("v_mov_b32 v%d, 0" % (112 + i)) if i < 64 else None
    k("s_mov_b32 s24, 0\ns_memrealtime s[60:61]\ns_memtime s[62:63]\ns_waitcnt lgkmcnt(0)")
    k.raw("L_loop_%s:" % name)
    vi = 0
    for i in range(32):
        if shape == 32:
            b = 48 + 4 * (i % 8)
            k.raw("    v_mfma_f32_32x32x16_bf16 v[112:127], a[%d:%d], v[%d:%d], v[112:127]" % (4 * i, 4 * i + 3, b, b + 3))
            if lds_reads: k.raw("    ds_read_b128 v[%d:%d], v3 offset:%d" % (48 + 4 * ((i + 4) % 8), 51 + 4 * ((i + 4) % 8), (i % 16) * 1024))
            for j in range(valu): k.raw("    v_mul_f32 v%d, v%d, v%d" % (80 + (vi % 16), 96 + (vi % 8), 100 + (vi % 4))); vi += 1
            if lds_reads and i % 2 == 1: k.raw("    s_waitcnt lgkmcnt(3)")
        else:
            b0 = 48 + 4 * ((2 * i) % 8); b1 = 48 + 4 * ((2 * i + 1) % 8)
            if i % 2 == 0:
                a0 = 4 * i; a1 = 4 * (i + 1)
                k.raw("    v_mfma_f32_16x16x32_bf16 v[112:115], a[%d:%d], v[%d:%d], v[112:115]" % (a0, a0 + 3, b0, b0 + 3))
                if lds_reads: k.raw("    ds_read_b128 v[%d:%d], v3 offset:%d" % (48 + 4 * ((2 * i + 4) % 8), 51 + 4 * ((2 * i + 4) % 8), (i % 16) * 1024))
                k.raw("    v_mfma_f32_16x16x32_bf16 v[116:119], a[%d:%d], v[%d:%d], v[116:119]" % (a1, a1 + 3, b0, b0 + 3))
                for j in range(valu): k.raw("    v_mul_f32 v%d, v%d, v%d" % (80 + (vi % 16), 96 + (vi % 8), 100 + (vi % 4))); vi += 1
                k.raw("    v_mfma_f32_16x16x32_bf16 v[120:123], a[%d:%d], v[%d:%d], v[120:123]" % (a0, a0 + 3, b1, b1 + 3))
                if lds_reads: k.raw("    ds_read_b128 v[%d:%d], v3 offset:%d" % (48 + 4 * ((2 * i + 5) % 8), 51 + 4 * ((2 * i + 5) % 8), ((i + 1) % 16) * 1024))
                k.raw("    v_mfma_f32_16x16x32_bf16 v[124:127], a[%d:%d], v[%d:%d], v[124:127]" % (a1, a1 + 3, b1, b1 + 3))
                for j in range(valu): k.raw("    v_mul_f32 v%d, v%d, v%d" % (80 + (vi % 16), 96 + (vi % 8), 100 + (vi % 4))); vi += 1
                if lds_reads: k.raw("    s_waitcnt lgkmcnt(2)")
    k.raw("    s_add_u32 s24, s24, 1\n    s_cmp_lt_u32 s24, %d\n    s_cbranch_scc1 L_loop_%s" % (n_outer, name))
    k.raw("    s_memrealtime s[64:65]\n    s_memtime s[66:67]\n    s_waitcnt vmcnt(0) lgkmcnt(0)")
    k.hist.clear(); k.lg.clear(); k.vm.clear()
    k("""
    s_sub_u32 s64, s64, s60
    s_sub_u32 s66, s66, s62
    v_mov_b32 v4, s64
    v_mov_b32 v5, s66
    s_lshl_b32 s3, s2, 5
    s_lshl_b32 s21, s20, 3
    s_add_u32 s3, s3, s21
    v_mov_b32 v8, s3
    v_add_f32 v6, v112, v120
    v_cmp_eq_u32 vcc, 0, v1
    s_and_saveexec_b64 s[30:31], vcc
    global_store_dwordx2 v8, v[4:5], s[16:17]
    s_waitcnt vmcnt(0)
    """)
    k.raw("L_e_%s:\n    s_endpgm" % name)
    return k
cfgs = []
for n_outer in (8, 64):
    for shape in (32, 16):
        for (r, v) in ((0, 0), (1, 0), (1, 2), (1, 3)):
            for act in (32, 28):
                if act == 28 and (r, v) not in ((1, 2),): continue
                cfgs.append(("c%d_r%d_v%d_n%d_a%d_kernel" % (shape, r, v, n_outer, act), shape, r, v, n_outer, act))
asm = HEAD; names = []
for c in cfgs:
    k = build(*c); asm += k.text() + kd(c[0], 512, 256); names.append(c[0])
co = build_raw(asm, names, 32, "clk_bench", 512)
if len(sys.argv) > 1 and sys.argv[1] == "build": sys.exit(0)
m = Module(co)
x = DeviceBuffer(64 << 20); o = DeviceBuffer(1 << 20); big = DeviceBuffer(256 << 20)
rng = np.random.default_rng(0)
xa = (rng.standard_normal(4 << 20).astype(np.float32).view(np.uint32) >> 16).astype(np.uint16)
h2d(x, xa)
for c in cfgs:
    res = []
    for rep in range(5):
        memset(o, 0); memset(big, 1)
        m.launch(c[0], (256, 1, 1), (256, 1, 1), [x.ptr, 0, o.ptr, 0], 65536); sync()
        d = d2h(o, np.uint32, 256 * 8).reshape(256, 4, 2)
        d = d[d[:, 0, 1] > 0]
        res.append((np.median(d[:, :, 0]) / 100.0, np.median(d[:, :, 1])))
    r = np.median(np.array(res), axis=0)
    fl = c[4] * 32 * 32768 * 4 * c[5] * 8
    print("%-28s %.2f us %d cycles -> %.0f MHz ; %.0f TF/s" % (c[0], r[0], r[1], r[1] / r[0], fl / r[0] / 1e6))
```

```python
import sys
sys.path.insert(0, "gen"); sys.path.insert(0, "tools")
from dsl import *
from hl import *
def build(name, pattern, n=128):
    k = K()
    k.raw(".globl %s\n.p2align 8\n.type %s,@function\n%s:" % (name, name, name))
    k("""
    s_load_dwordx2 s[16:17], s[0:1], 16
    s_load_dwordx2 s[8:9], s[0:1], 0
    v_lshrrev_b32 v2, 6, v0
    v_readfirstlane_b32 s20, v2
    v_and_b32 v1, 63, v0
    v_lshlrev_b32 v3, 4, v1
    s_mov_b32 s10, 0x10000000
    s_mov_b32 s11, 0x00020000
    s_lshl_b32 s41, s20, 10
    s_mov_b32 m0, s41
    s_mov_b32 s40, 0
    s_cmp_eq_u32 s20, 0
    s_cselect_b64 s[70:71], -1, 0
    s_cmp_eq_u32 s20, 1
    s_cselect_b64 s[72:73], -1, 0
    s_cmp_eq_u32 s20, 2
    s_cselect_b64 s[74:75], -1, 0
    s_cmp_eq_u32 s20, 3
    s_cselect_b64 s[76:77], -1, 0
    s_waitcnt lgkmcnt(0)
    s_barrier
    s_memtime s[60:61]
    s_waitcnt lgkmcnt(0)
    """)
    vi = 0; ri = 0
    for i in range(n):
        k.raw("    v_mfma_f32_32x32x16_bf16 v[16:31], a[%d:%d], v[48:51], v[16:31]" % (4 * (i % 32), 4 * (i % 32) + 3))
        for ch in pattern[i % len(pattern)]:
            r = 64 + (vi % 24); vi += 1
            if ch == "v": k.raw("    v_mul_f32 v%d, v100, v101" % r)
            elif ch == "V": k.raw("    v_fma_f32 v%d, v100, v101, v102" % r)
            elif ch == "t": k.raw("    v_exp_f32 v%d, v100" % r)
            elif ch == "r":
                k.raw("    ds_read_b128 v[%d:%d], v3 offset:%d" % (112 + 4 * (ri % 8), 115 + 4 * (ri % 8), (ri % 16) * 1024)); ri += 1
            elif ch == "w": k.raw("    s_waitcnt lgkmcnt(4)")
            elif ch == "s": k.raw("    s_add_u32 s30, s30, s31")
            elif ch == "d": k.raw("    buffer_load_dwordx4 v3, s[8:11], s40 offen lds")
            elif ch == "n": k.raw("    s_nop 0")
            elif ch == "c": k.raw("    v_cvt_pk_bf16_f32 v%d, v100, v101" % r)
            elif ch == "W": k.raw("    ds_write_b128 v3, v[104:107] offset:%d" % 32768)
            elif ch == "S": k.raw("    buffer_store_dwordx4 v[104:107], v3, s[8:11], s40 offen offset:%d" % ((i % 4) * 1024))
            elif ch == "L": k.raw("    buffer_load_dword v108, v3, s[8:11], s40 offen")
            elif ch == "b": k.raw("    s_barrier")
            elif ch in "0123":
                j = int(ch)
                k.raw("    s_mov_b64 exec, s[%d:%d]\n    buffer_store_dwordx4 v[104:107], v3, s[8:11], s40 offen offset:%d\n    s_mov_b64 exec, -1" % (70 + 2 * j, 71 + 2 * j, (i % 4) * 1024))
            elif ch in "wxyz"[1:] or ch == "q":
                j = "qxyz".index(ch)
                k.raw("    s_cmp_eq_u32 s20, %d\n    s_cbranch_scc0 L_sk_%s_%d\n    buffer_store_dwordx4 v[104:107], v3, s[8:11], s40 offen offset:%d\nL_sk_%s_%d:" % (j, name, i, (i % 4) * 1024, name, i))
    k.raw("    s_memtime s[62:63]\n    s_waitcnt vmcnt(0) lgkmcnt(0)")
    k("""
    s_sub_u32 s62, s62, s60
    v_mov_b32 v4, s62
    s_lshl_b32 s3, s2, 4
    s_lshl_b32 s21, s20, 2
    s_add_u32 s3, s3, s21
    v_mov_b32 v8, s3
    v_cmp_eq_u32 vcc, 0, v1
    s_and_saveexec_b64 s[30:31], vcc
    global_store_dword v8, v4, s[16:17]
    s_waitcnt vmcnt(0)
    s_endpgm
    """)
    return k
B = "rvvvv"
def pat(d):
    p = [B] * 32
    for i_, x in d.items(): p[i_] = x
    return p
pats = {
 "base": pat({}), "S_same": pat({16: "rS"}), "S_samev4": pat({16: "rSvvvv"}),
 "S_exec": pat({16: "r0v", 20: "r1v", 24: "r2v", 28: "r3v"}),
 "S_exec3": pat({16: "r0v", 19: "r1v", 22: "r2v", 25: "r3v"}),
 "S_br": pat({16: "rqvv", 20: "rxvv", 24: "ryvv", 28: "rzvv"}),
 "W_same": pat({16: "rW"}), "W_samev2": pat({16: "rWvv"}),
 "SW": pat({16: "rS", 8: "rW"}),
}
asm = HEAD; names = []
for nm, p in pats.items():
    k = build("p_" + nm + "_kernel", p)
    asm += k.text() + kd("p_" + nm + "_kernel", 512, 256); names.append("p_" + nm + "_kernel")
co = build_raw(asm, names, 32, "issue_bench", 512)
if len(sys.argv) > 1 and sys.argv[1] == "build": sys.exit(0)
m = Module(co)
x = DeviceBuffer(64 << 20); o = DeviceBuffer(1 << 20)
for n in names:
    res = []
    for rep in range(3):
        m.launch(n, (256, 1, 1), (256, 1, 1), [x.ptr, 0, o.ptr, 0], 65536); sync()
        d = d2h(o, np.uint32, 256 * 4)
        res.append(np.median(d))
    print("%-22s %.2f cyc/MFMA" % (n, np.median(res) / 128))
```
